```python
import torch

def _softmax(x, axis=-1):
    return torch.softmax(x, dim=axis)
def _gelu(x):
    return torch.nn.functional.gelu(x, approximate="tanh")
def _silu(x):
    return torch.nn.functional.silu(x)
def _sigmoid(x):
    return torch.sigmoid(x)
def _layernorm(x, axis=-1, eps=1e-5):
    m = x.mean(dim=axis, keepdim=True)
    v = x.var(dim=axis, keepdim=True, unbiased=False)
    return (x - m) / torch.sqrt(v + eps)
def _scatter_add(tgt, idx, src, axis=0):
    return tgt.clone().index_add_(axis, idx, src)
def _segment_sum(src, seg, n):
    out = torch.zeros((n,) + src.shape[1:], dtype=src.dtype)
    return out.index_add_(0, seg, src)
def _pad(x, pw):
    flat = tuple(v for pair in reversed(pw) for v in pair)
    return torch.nn.functional.pad(x, flat)

kernel_name = 'standalone__gqa_block_cached__near_ridge'

def setup_inputs():

    _w = (lambda a: (lambda t: t.to(torch.bfloat16) if t.is_floating_point() else t)(torch.as_tensor(a)))
    B, Sq, D = 32, 96, 448
    Hq, Hkv, Sk, Dh = 16, 8, 512, 256
    assert Hq % Hkv == 0, (Hq, Hkv)
    return {
        "x": _w((lambda *s: torch.randn(*s, dtype=torch.bfloat16) * 0.8)(B, Sq, D)),
        "k_cache": _w((lambda *s: torch.randn(*s, dtype=torch.bfloat16) * 0.8)(B, Hkv, Sk, Dh)),
        "v_cache": _w((lambda *s: torch.randn(*s, dtype=torch.bfloat16) * 0.05)(B, Hkv, Sk, Dh)),
        "wq": _w((lambda *s: torch.randn(*s, dtype=torch.bfloat16) * 0.8)(D, Hq * Dh) * (D ** -0.5)),
        "wo": _w((lambda *s: torch.randn(*s, dtype=torch.bfloat16) * 0.05)(Hq * Dh, D) * ((Hq * Dh) ** -0.5)),
    }

def reference(x, k_cache, v_cache, wq, wo):
    B, Sq, D = x.shape
    Hq, Dh = 16, 256
    Hkv = k_cache.shape[1]
    rep = Hq // Hkv
    q = (lambda x, *d: x.permute(*d))((x @ wq).reshape(B, Sq, Hq, Dh), 0, 2, 1, 3)
    k = (lambda x, n, axis: torch.repeat_interleave(x, n, dim=axis))(k_cache, rep, axis=1)
    v = (lambda x, n, axis: torch.repeat_interleave(x, n, dim=axis))(v_cache, rep, axis=1)
    scores = torch.einsum("bhqd,bhkd->bhqk", q, k) * (Dh ** -0.5)
    p = _softmax(scores, axis=-1)
    o = torch.einsum("bhqk,bhkd->bhqd", p, v)
    return (lambda x, *d: x.permute(*d))(o, 0, 2, 1, 3).reshape(B, Sq, Hq * Dh) @ wo
```

```python
import re

def regs(kind, lo, n=1):
    return [(kind, lo + i) for i in range(n)]

class I:
    __slots__ = ('text', 'cls', 'rd', 'wr', 'cnt', 'earliest', 'deadline', 'target', 'after',
                 'gap', 'needs', 'tag', 'pos', 'soft')
    def __init__(self, text, cls, rd=(), wr=(), cnt=None, earliest=0, deadline=None, target=None,
                 after=(), needs=(), tag=None):
        self.text = text
        self.cls = cls
        self.rd = list(rd); self.wr = list(wr)
        self.cnt = cnt
        self.earliest = earliest
        self.deadline = deadline
        self.target = earliest if target is None else target
        self.after = list(after)
        self.needs = list(needs)
        self.gap = None
        self.tag = tag
        self.pos = None
        self.soft = False
    def __repr__(self):
        return self.text

class Sched:
    def __init__(self):
        self.mf = []
        self.fill = []
        self.reserve = set()
    def mfma(self, ins):
        ins.gap = len(self.mf)
        self.mf.append(ins)
        return ins
    def add(self, ins):
        self.fill.append(ins)
        return ins

    def run(self, verbose=False):
        n = len(self.mf)
        pend = sorted(self.fill, key=lambda o: o.target)
        order_idx = {id(o): i for i, o in enumerate(self.fill)}
        out = []
        self.over = []
        changed = True
        while changed:
            changed = False
            for o in self.fill:
                if o.deadline is None: continue
                for (p, d) in o.after:
                    if p.cls == 'M': continue
                    nd = o.deadline - d
                    if p.deadline is None or p.deadline > nd:
                        p.deadline = nd; changed = True
        def ready(o, g):
            if o.earliest > g: return False
            for (p, d) in o.after:
                if p.gap is None or p.gap + d > g: return False
            return True
        for g in range(n + 64):
            if g < n:
                out.append(self.mf[g])
            elif not pend:
                break
            sc = []; dd = []; vv = []
            slots = 2
            shadow = 0 if g in self.reserve else 1
            free = g >= n - 1
            def place(o):
                nonlocal slots, shadow
                o.gap = g
                pend.remove(o)
                if o.cls == 'S':
                    sc.append(o)
                    if shadow > 0: shadow -= 1
                    else: slots -= 1
                elif o.cls == 'D': dd.append(o); slots -= 1
                elif o.cls == 'G': dd.append(o); slots -= 2
                elif o.cls == 'V': vv.append(o); slots -= 1
                elif o.cls == 'X': vv.append(o); slots -= 2
            def fits(o):
                if free: return True
                if o.cls == 'S': return shadow > 0
                if o.cls == 'D': return slots >= 1 and not dd
                if o.cls == 'V': return slots >= 1
                return slots >= 2
            progress = True
            while progress:
                progress = False
                miss = None
                for o in list(pend):
                    if o.deadline is not None and o.deadline <= g + 1:
                        if not ready(o, g):
                            miss = miss or o
                            continue
                        place(o); progress = True
            if miss is not None and g + 1 < n:
                o = miss
                raise RuntimeError(f'deadline miss at gap {g}: {o.text} dl={o.deadline} earliest={o.earliest} after={[(p.text, p.gap, d) for p, d in o.after]}')
            progress = True
            while progress:
                progress = False
                for o in pend:
                    if o.target > g + 40 and not free: break
                    if o.soft and o.target > g and not free: continue
                    if fits(o) and ready(o, g):
                        place(o); progress = True
                        break
            if slots < 0:
                self.over.append((g, -slots))
            key = lambda o: order_idx[id(o)]
            out += sorted(sc, key=key) + sorted(dd, key=key) + sorted(vv, key=key)
        assert not pend, [ (o.text, o.earliest, [(p.text, p.gap) for p, d in o.after]) for o in pend[:5]]
        return out

MAXC = {'vm': 62, 'lgkm': 14}

def insert_waits(ins, lead=7):
    out = []
    q = {'vm': [], 'lgkm': []}
    done = {'vm': 0, 'lgkm': 0}
    pendw = {}
    idx_of = {}
    nm = 0
    issue_m = {}
    nwait = 0
    for o in ins:
        req = {'vm': 0, 'lgkm': 0}
        for r in o.rd + o.wr:
            if r in pendw:
                c, k = pendw[r]
                req[c] = max(req[c], k + 1)
        for p in o.needs:
            c, k = idx_of[id(p)]
            req[c] = max(req[c], k + 1)
        need = {c: req[c] for c in req if req[c] > done[c]}
        if need:
            pos = len(out)
            if o.cls == 'M':
                j = len(out) - 1
                while j >= 0 and out[j].cls != 'M' and out[j].tag != 'label': j -= 1
                if j >= 0 and out[j].cls == 'M':
                    late = [x for x in out[j + 1:] if x.cnt]
                    ok = all(not (x.cnt in need and idx_of[id(x)][1] < need[x.cnt]) for x in late)
                    if ok and not any(x.tag in ('barrier',) for x in out[j + 1:]):
                        pos = j + 1
            issued = {c: len(q[c]) - sum(1 for x in out[pos:] if x.cnt == c) for c in q}
            parts = []
            for c in ('vm', 'lgkm'):
                if c not in need: continue
                k = need[c]
                if c == 'lgkm' and o.cls == 'M':
                    while k < issued[c] and nm - issue_m[id(q[c][k])] >= lead: k += 1
                nleft = min(issued[c] - k, MAXC[c])
                done[c] = max(done[c], issued[c] - nleft)
                parts.append(f'{"vmcnt" if c == "vm" else "lgkmcnt"}({nleft})')
            w = I('s_waitcnt ' + ' '.join(parts), 'S', tag='wait')
            out.insert(pos, w); nwait += 1
        if o.tag == 'fullwait':
            for c in q: done[c] = len(q[c])
        if o.tag == 'vmwait0': done['vm'] = len(q['vm'])
        if o.tag == 'lgkmwait0': done['lgkm'] = len(q['lgkm'])
        for r in list(pendw):
            c, k = pendw[r]
            if k < done[c]: del pendw[r]
        out.append(o)
        if o.cls == 'M': nm += 1
        if o.cnt:
            idx_of[id(o)] = (o.cnt, len(q[o.cnt]))
            issue_m[id(o)] = nm
            for r in o.wr: pendw[r] = (o.cnt, len(q[o.cnt]))
            q[o.cnt].append(o)
    return out

TRANS = ('v_exp_f32', 'v_rcp_f32', 'v_log_f32', 'v_rsq_f32', 'v_sqrt_f32')

def is_valu(o): return o.cls in ('V', 'X')
def is_store128(o): return o.text.startswith(('buffer_store_dwordx4', 'buffer_store_dwordx3', 'buffer_atomic_cmpswap_x2'))

def check_hazards(ins, fix=True):
    out = list(ins)
    nfix = 0
    i = 0
    def states(o):
        m = re.match(r's_nop (\d+)', o.text)
        return int(m.group(1)) + 1 if m else (0 if o.tag in ('label', 'dir') else 1)
    while i < len(out):
        c = out[i]
        needn = 0
        dist = 0; nm = 0
        crd = set(c.rd); cwr = set(c.wr)
        j = i - 1
        while j >= 0 and dist < 12:
            p = out[j]
            if p.tag == 'label' and p.text.startswith('L_x'):
                break
            pw = set(p.wr); pr = set(p.rd)
            req = 0
            if p.cls == 'M':
                if c.cls == 'M':
                    ab = set(c.rd[:8])
                    cc = set(c.rd[8:])
                    if pw & ab: req = max(req, 8 if nm < 3 else 0)
                    if pw & cc and cc != pw: req = max(req, 6 if nm < 3 else 0)
                    if pw & cwr and cwr != pw: req = max(req, 6 if nm < 3 else 0)
                elif (pw & (crd | cwr)) and c.cls in ('V', 'X', 'D', 'G'):
                    req = max(req, 8 if nm < 3 else 0)
                if is_valu(c) and set(p.rd[8:]) & cwr: req = max(req, 3)
            if is_valu(p):
                vw = {r for r in pw if r[0] in 'va'}
                sw = {r for r in pw if r[0] in ('s', 'vcc')}
                if c.cls == 'M' and vw & crd: req = max(req, 2)
                if c.text.startswith('v_permlane') and vw & crd: req = max(req, 2)
                if c.text.startswith(('v_readfirstlane', 'v_readlane')) and vw & crd: req = max(req, 1)
                if p.text.startswith(TRANS) and is_valu(c) and not c.text.startswith(TRANS) and vw & crd: req = max(req, 1)
                if sw & crd:
                    if c.cls == 'G' and c.cnt == 'vm': req = max(req, 5)
                    elif is_valu(c): req = max(req, 2)
                    elif c.cls == 'S': req = max(req, 4)
            if is_store128(p) and (set(p.rd) & cwr) and c.cls in ('V', 'X', 'M', 'D', 'G'): req = max(req, 2)
            if p.cls == 'S' and ('m0', 0) in pw and c.text.endswith(' lds'): req = max(req, 1)
            if req > dist: needn = max(needn, req - dist)
            dist += states(p)
            if p.cls == 'M': nm += 1
            j -= 1
        if needn:
            if not fix: raise RuntimeError(f'hazard before {c.text}: {needn}')
            out.insert(i, I(f's_nop {needn - 1}', 'S', tag='nop')); nfix += 1
            i += 1
        i += 1
    return out, nfix

def estimate(ins):
    total = 0; cur = None; stall = []
    k = 0
    def cost(lst):
        t = 4; first = True; prevv = False
        for o in lst:
            if o.tag in ('label', 'dir'): continue
            if o.cls == 'S':
                m = re.match(r's_nop (\d+)', o.text)
                t += 4 * (int(m.group(1)) + 1 if m else 1)
            else:
                if t < 8: t = 8
                if o.cls in ('D', 'G') and prevv: t += 8
                t += 8 if o.cls in ('X', 'G') else 4
                prevv = o.cls in ('V', 'X')
            first = False
        return max(16, t)
    for o in ins:
        if o.cls == 'M':
            if cur is not None:
                c = cost(cur); total += c
                if c > 16: stall.append((k - 1, c - 16))
            cur = []; k += 1
        elif cur is not None:
            cur.append(o)
    return total, stall
```

```python
import sys, struct, math
from sched import I, Sched, regs, insert_waits, check_hazards, estimate

NAME = 'standalone__gqa_block_cached__near_ridge_kernel'
def v(n, k=1): return f'v{n}' if k == 1 else f'v[{n}:{n+k-1}]'
def a(n, k=1): return f'a{n}' if k == 1 else f'a[{n}:{n+k-1}]'
def R(r, k=1):
    return (v if r[0] == 'v' else a)(r[1], k)
def RR(r, k): return regs(r[0], r[1], k)
def f32(x): return struct.unpack('<I', struct.pack('<f', x))[0]

V_XOFF, V_WQ, V_K0, V_K1, V_V, V_WO = 4, 5, 6, 7, 8, 9
V_XW, V_XR, V_SEND, V_THR0 = 10, 11, 12, 13
V_NON = 14
A_WQ, A_K, A_V, A_WO = 16, 20, 24, 28
V_CI, V_S, V_T = 32, 44, 68
V_RCP, V_MPRE = 80, 83
V_FLG = 86
V_Q = 88
V_PH = 184
V_S2 = 232
AG_X, AG_WQR, AG_KV, AG_PL, AG_WOR, AG_ONE = 0, 168, 0, 64, 184, 248
NPL = 10
SRD_X, SRD_WQ, SRD_K, SRD_V, SRD_WO, SRD_OUT, SRD_WS, SRD_DBG, SRD_FLG = 4, 8, 12, 16, 20, 24, 28, 32, 36
S_W, S_HH, S_RH, S_B, S_H, S_WB = 56, 57, 58, 59, 60, 61
S_OFF = (62, 63)
S_X1, S_X2, S_C, S_THR, S_MODE, S_BAD = 64, 65, 66, 67, 68, 69
S_COL, S_SEND, S_NON = 70, 77, 84
S_FOFF = 86
S_T0, S_T1, S_T2, S_T3 = 94, 95, 96, 97
SLOT = 32768
XB = 3072
FLAG_OFF = 64 << 20
XSLOT = 3

def Qr(J, q): return ('v', V_Q + (J * 3 + q) * 4)
def Pr(J, q): return ('a', AG_PL + (J * 3 + q) * 4) if J < NPL else ('v', V_PH + ((J - NPL) * 3 + q) * 4)
def Xr(j, q): return ('a', AG_X + (j * 3 + q) * 4)
def acc1(cb, t, q):
    i = (t * 3 + q) * 4
    if cb & 1: return ('v', V_PH + i)
    return ('v', V_S2 + i) if i < 24 else ('v', V_S + i - 24)
def Sr(n, q):
    k = n % 4 if n < 24 else n % 2
    return ('v', [V_S, V_S + 12, V_S2, V_S2 + 12][k] + 4 * q)
def acc3(t, q): return ('v', V_CI + 12 * ((t + 1) & 3) + 4 * q)
def acc4(t, q): return ('v', V_PH + (t * 3 + q) * 4)
def PT(ts, q): return ('v', V_S2 + (ts * 3 + q) * 4)

class Gen:
    def __init__(self, opt):
        self.opt = opt
        self.pre = []; self.post = []; self.extra = []
        self.S = Sched()

    def e(self, lst, text, cls='S', rd=(), wr=(), cnt=None, tag=None, needs=()):
        o = I(text, cls, rd, wr, cnt, tag=tag, needs=needs); lst.append(o); return o
    def vop(self, lst, op, d, *src, cls='V'):
        rd = []
        for s in src:
            if isinstance(s, str) and s[0] == 'v' and s[1:].isdigit(): rd.append(('v', int(s[1:])))
            if isinstance(s, str) and s[0] == 's' and s[1:].isdigit(): rd.append(('s', int(s[1:])))
        return self.e(lst, f'{op} v{d}, ' + ', '.join(str(s) for s in src), cls, rd, [('v', d)])

    def srd(self, L, n, lo, hi, size, addlo=None):
        if addlo is None:
            self.e(L, f's_mov_b32 s{n}, s{lo}'); self.e(L, f's_mov_b32 s{n+1}, s{hi}')
        else:
            self.e(L, f's_add_u32 s{n}, s{lo}, {addlo}'); self.e(L, f's_addc_u32 s{n+1}, s{hi}, 0')
        self.e(L, f's_mov_b32 s{n+2}, {size}'); self.e(L, f's_mov_b32 s{n+3}, 0x00020000')

    def dma_text(self, vo, srd, soff, nt):
        return f'buffer_load_dwordx4 v{vo}, s[{srd}:{srd+3}], {soff} offen{" nt" if nt else ""} lds'

    def stage_dmas(self, k):
        res = []
        base = self.slot[k] * SLOT
        for m in range(8):
            if k < 14:
                i, hh = m >> 1, m & 1
                u = 4 * k + i; cb, j = divmod(u, 14)
                res.append((V_WQ, SRD_WQ, (None, j * 32 * 8192 + cb * 128 + hh * 512), base + i * 8192 + hh * 4096, self.opt['nt_w']))
            elif k < 22:
                res.append((V_K0 + (m & 1), SRD_K, (None, (k - 14) * 32768 + m * 4096), base + m * 4096, True))
            elif k < 30:
                dp, kh = divmod(k - 22, 2)
                res.append((V_V, SRD_V, (None, (kh * 256 + 32 * m) * 512 + dp * 128), base + m * 4096, True))
            else:
                pos, kh = divmod(k - 30, 2)
                hh = m >> 2
                res.append((V_WO, SRD_WO, (S_COL + pos, (hh * 256 + kh * 128 + 32 * (m & 3)) * 896), base + m * 4096, self.opt['nt_w']))
        return res

    def slots(self):
        s = [k % 3 for k in range(14)]
        s += [3, 4, 2, 0, 1, 3, 4, 2]
        s += [0, 1, 3, 4, 2, 0, 1, 3]
        ring = [4, 2, 0, 1]
        s += [ring[i % 4] for i in range(14)]
        self.slot = s
        self.prev = []
        for k in range(44):
            p = [j for j in range(k) if s[j] == s[k]]
            self.prev.append(p[-1] if p else None)

    def prologue(self):
        L = self.pre; e = self.e; vop = self.vop
        e(L, 's_cmp_ge_u32 s2, 256'); e(L, 's_cbranch_scc1 L_end')
        e(L, 's_load_dwordx8 s[40:47], s[0:1], 0')
        e(L, 's_load_dwordx8 s[48:55], s[0:1], 32')
        if self.opt['stamp']: e(L, 's_memtime s[98:99]')
        vop(L, 'v_lshrrev_b32', 1, 6, 'v0')
        vop(L, 'v_and_b32', 2, 63, 'v0')
        e(L, f'v_readfirstlane_b32 s{S_W}, v1', 'V', [('v', 1)], [('s', S_W)])
        e(L, f's_lshr_b32 s{S_B}, s2, 3'); e(L, f's_and_b32 s{S_H}, s2, 7')
        e(L, f's_mov_b32 s{S_X1}, 14336'); e(L, f's_mov_b32 s{S_X2}, 28672')
        e(L, f's_mov_b32 s{S_MODE}, 0')
        e(L, f's_lshr_b32 s{S_HH}, s{S_W}, 1', rd=[('s', S_W)]); e(L, f's_and_b32 s{S_RH}, s{S_W}, 1')
        e(L, f's_lshl_b32 s{S_WB}, s{S_W}, 10')
        vop(L, 'v_lshrrev_b32', 3, 3, 'v2')
        vop(L, 'v_bfe_u32', 80, 'v2', 1, 2)
        vop(L, 'v_bfe_u32', 81, 'v2', 4, 1)
        e(L, f's_lshl_b32 s{S_T0}, s{S_RH}, 1')
        vop(L, 'v_or_b32', 81, f's{S_T0}', 'v81')
        vop(L, 'v_xor_b32', 81, 'v80', 'v81')
        vop(L, 'v_and_b32', 82, 1, 'v2')
        vop(L, 'v_lshl_or_b32', 81, 'v81', 1, 'v82')
        e(L, f's_lshl_b32 s{S_T1}, s{S_W}, 3')
        vop(L, 'v_add_u32', 3, f's{S_T1}', 'v3')
        vop(L, 'v_lshlrev_b32', V_WQ, 13, 'v3')
        vop(L, 'v_lshl_add_u32', V_WQ, 'v81', 4, f'v{V_WQ}')
        vop(L, 'v_and_b32', 83, 15, 'v2')
        vop(L, 'v_lshrrev_b32', 84, 4, 'v2')
        e(L, f's_mul_i32 s{S_T2}, s{S_RH}, 48')
        vop(L, 'v_add_u32', 85, f's{S_T2}', 'v83')
        vop(L, 'v_mul_u32_u24', 85, 896, 'v85')
        vop(L, 'v_lshl_add_u32', V_XOFF, 'v84', 4, 'v85')
        e(L, 's_waitcnt lgkmcnt(0)')
        e(L, f's_mul_i32 s{S_T0}, s{S_B}, 86016'); e(L, f's_lshl_b32 s{S_T1}, s{S_H}, 10')
        self.srd(L, SRD_WQ, 46, 47, 448 * 8192 - 7 * 1024, f's{S_T1}')
        self.srd(L, SRD_X, 40, 41, 86016, f's{S_T0}')
        e(L, 'L_start:', tag='label')
        self.dma = {}
        self.xld = {}
        def pdma(k):
            self.dma[k] = []
            for (vo, srd, (sb, lit), lo, nt) in self.stage_dmas(k):
                e(L, f's_add_u32 m0, s{S_WB}, {lo}', wr=[('m0', 0)])
                e(L, f's_mov_b32 s{S_OFF[0]}, {lit}')
                self.dma[k].append(e(L, self.dma_text(vo, srd, f's{S_OFF[0]}', nt), 'G', [('v', vo)], [], 'vm'))
        def xl(j):
            for q in range(3):
                so = ['0', f's{S_X1}', f's{S_X2}'][q]
                self.xld[j, q] = e(L, f'buffer_load_dwordx4 {R(Xr(j, q), 4)}, v{V_XOFF}, s[{SRD_X}:{SRD_X+3}], {so} offen offset:{64*j}',
                                   'G', [('v', V_XOFF)], RR(Xr(j, q), 4), 'vm')
        pdma(0)
        for j in range(4): xl(j)
        pdma(1)
        for j in range(4, 8): xl(j)
        e(L, f's_lshl_b32 s{S_T2}, s2, 18')
        self.srd(L, SRD_K, 42, 43, 262144, f's{S_T2}')
        self.srd(L, SRD_V, 44, 45, 262144, f's{S_T2}')
        e(L, f's_mul_i32 s{S_T2}, s{S_H}, {512*896}')
        self.srd(L, SRD_WO, 48, 49, 512 * 896, f's{S_T2}')
        e(L, f's_mul_i32 s{S_T0}, s{S_B}, 86016')
        self.srd(L, SRD_OUT, 50, 51, 86016, f's{S_T0}')
        self.srd(L, SRD_WS, 54, 55, FLAG_OFF)
        self.srd(L, SRD_DBG, 52, 53, 256)
        e(L, f's_lshl_b32 s{S_T0}, s{S_B}, 9'); e(L, f's_add_u32 s{S_T0}, s{S_T0}, {FLAG_OFF}')
        self.srd(L, SRD_FLG, 54, 55, 512, f's{S_T0}')
        pdma(2)
        for j in range(8, 12): xl(j)
        vop(L, 'v_and_b32', 2, 63, 'v0')
        vop(L, 'v_and_b32', 83, 15, 'v2')
        vop(L, 'v_lshrrev_b32', 84, 4, 'v2')
        vop(L, 'v_lshrrev_b32', 3, 3, 'v2')
        e(L, f's_lshl_b32 s{S_T1}, s{S_W}, 3')
        vop(L, 'v_add_u32', 3, f's{S_T1}', 'v3')
        vop(L, 'v_bfe_u32', 80, 'v2', 1, 2)
        vop(L, 'v_bfe_u32', 81, 'v2', 4, 2)
        vop(L, 'v_xor_b32', 81, 'v80', 'v81')
        vop(L, 'v_and_b32', 82, 1, 'v2')
        vop(L, 'v_lshl_or_b32', 81, 'v81', 1, 'v82')
        vop(L, 'v_lshlrev_b32', 81, 4, 'v81')
        vop(L, 'v_lshl_add_u32', V_V, 'v3', 9, 'v81')
        vop(L, 'v_mul_u32_u24', V_WO, 896, 'v3')
        vop(L, 'v_add_u32', V_WO, f'v{V_WO}', 'v81')
        vop(L, 'v_lshrrev_b32', 80, 5, 'v2')
        e(L, f's_lshl_b32 s{S_T1}, s{S_W}, 1')
        vop(L, 'v_add_u32', 80, f's{S_T1}', 'v80')
        vop(L, 'v_and_b32', 81, 31, 'v2')
        vop(L, 'v_xor_b32', 81, 'v81', 'v80')
        vop(L, 'v_lshlrev_b32', 81, 4, 'v81')
        vop(L, 'v_lshl_add_u32', V_K0, 'v80', 9, 'v81')
        vop(L, 'v_xor_b32', V_K1, 0x80, f'v{V_K0}')
        vop(L, 'v_bfe_u32', 80, 'v2', 2, 2)
        vop(L, 'v_bfe_u32', 81, 'v2', 3, 2)
        vop(L, 'v_and_b32', 82, 3, 'v2')
        vop(L, 'v_lshlrev_b32', 82, 3, 'v82')
        vop(L, 'v_lshl_add_u32', 85, 'v84', 3, 'v80')
        vop(L, 'v_lshl_add_u32', 85, 'v85', 7, 'v82')
        e(L, f's_lshl_b32 s{S_T0}, s{S_HH}, 12')
        vop(L, 'v_add_u32', 85, f's{S_T0}', 'v85')
        vop(L, 'v_lshl_add_u32', 86, 'v84', 2, 'v80')
        vop(L, 'v_lshl_add_u32', 86, 'v86', 7, 'v82')
        e(L, f's_lshl_b32 s{S_T0}, s{S_HH}, 14')
        e(L, f's_add_u32 s{S_T0}, s{S_T0}, {self.slot[30]*SLOT}')
        e(L, f's_lshl_b32 s{S_T1}, s{S_HH}, 1'); e(L, f's_xor_b32 s{S_T1}, s{S_T1}, 2')
        vop(L, 'v_add_u32', 87, f's{S_T0}', 'v86')
        vop(L, 'v_xor_b32', 1, f's{S_T1}', 'v81')
        if self.slot[22]: vop(L, 'v_add_u32', 86, self.slot[22] * SLOT, 'v86')
        for t in range(4):
            vop(L, 'v_xor_b32', 80, t, 'v81')
            vop(L, 'v_lshl_add_u32', A_WQ + t, 'v80', 5, 'v85')
            vop(L, 'v_lshl_add_u32', A_V + t, 'v80', 5, 'v86')
            vop(L, 'v_xor_b32', 80, t, 'v1')
            vop(L, 'v_lshl_add_u32', A_WO + t, 'v80', 5, 'v87')
        vop(L, 'v_xor_b32', 81, 'v84', 'v83')
        vop(L, 'v_lshlrev_b32', 85, 9, 'v83')
        vop(L, 'v_add_u32', 85, self.slot[14] * SLOT, 'v85')
        for jj in range(4):
            vop(L, 'v_xor_b32', 80, 4 * jj, 'v81')
            vop(L, 'v_lshl_add_u32', A_K + jj, 'v80', 4, 'v85')
        self.base = {A_WQ: self.slot[0], A_K: self.slot[14], A_V: self.slot[22], A_WO: self.slot[30]}
        vop(L, 'v_lshlrev_b32', 80, 4, 'v2')
        e(L, f's_mul_i32 s{S_T0}, s{S_W}, 6144'); e(L, f's_add_u32 s{S_T0}, s{S_T0}, {XSLOT*SLOT}')
        vop(L, 'v_add_u32', V_XW, f's{S_T0}', 'v80')
        e(L, f's_xor_b32 s{S_T1}, s{S_W}, 2')
        e(L, f's_mul_i32 s{S_T0}, s{S_T1}, 6144'); e(L, f's_add_u32 s{S_T0}, s{S_T0}, {XSLOT*SLOT}')
        vop(L, 'v_add_u32', V_XR, f's{S_T0}', 'v80')
        e(L, f's_mul_i32 s{S_T0}, s{S_W}, {XB}')
        vop(L, 'v_add_u32', V_SEND, f's{S_T0}', 'v80')
        e(L, 'v_cmp_eq_u32 vcc, 0, v0', 'V', [('v', 0)], [('vcc', 0)])
        vop(L, 'v_mov_b32', 80, 0x7ffffff0)
        e(L, f'v_cndmask_b32 v{V_THR0}, v80, 0, vcc', 'V', [('v', 80), ('vcc', 0)], [('v', V_THR0)])
        for i in range(7):
            e(L, f's_add_u32 s{S_T0}, s{S_H}, {1+i}')
            e(L, f's_sub_u32 s{S_T1}, s{S_T0}, 7'); e(L, f's_cmp_ge_u32 s{S_T0}, 7'); e(L, f's_cselect_b32 s{S_T0}, s{S_T1}, s{S_T0}')
            e(L, f's_sub_u32 s{S_T1}, s{S_T0}, 7'); e(L, f's_cmp_ge_u32 s{S_T0}, 7'); e(L, f's_cselect_b32 s{S_T0}, s{S_T1}, s{S_T0}')
            e(L, f's_lshl_b32 s{S_COL+i}, s{S_T0}, 7')
            e(L, f's_lshl_b32 s{S_T1}, s{S_T0}, 3'); e(L, f's_add_u32 s{S_T1}, s{S_T1}, s{S_H}')
            e(L, f's_lshl_b32 s{S_FOFF+i}, s{S_T1}, 3')
            e(L, f's_mul_i32 s{S_T2}, s{S_B}, 56'); e(L, f's_add_u32 s{S_T1}, s{S_T1}, s{S_T2}')
            e(L, f's_mul_i32 s{S_SEND+i}, s{S_T1}, {4*XB}')
        e(L, f's_mov_b32 s{S_C}, {hex(f32(math.log2(math.e) / 16))}')
        e(L, f's_mov_b32 s{S_THR}, {hex(f32(2.0**30))}')
        e(L, f's_mov_b32 s{S_BAD}, 0')
        vop(L, 'v_mov_b32', 80, 0x3f803f80)
        for i in range(4):
            e(L, f'v_accvgpr_write_b32 a{AG_ONE+i}, v80', 'V', [('v', 80)], [('a', AG_ONE + i)])
        for q in range(3): vop(L, 'v_mov_b32', V_MPRE + q, 0xff800000)

    def mf(self, d, A, B, c):
        ctext = '0' if c is None else R(c, 4)
        rd = RR(A, 4) + RR(B, 4) + ([] if c is None else RR(c, 4))
        o = I(f'v_mfma_f32_16x16x32_bf16 {R(d,4)}, {R(A,4)}, {R(B,4)}, {ctext}', 'M', rd, RR(d, 4))
        self.S.mfma(o)
        for r in RR(A, 4) + RR(B, 4): self.lastuse[r] = o.gap
        return o

    def build(self):
        S = self.S; opt = self.opt
        stop = opt['stop']
        self.lastuse = {}
        stage_reads = {k: [] for k in range(44)}
        ring = {'n': 0}
        groups = []

        def frag(base, nfr):
            r = ('a', base + 4 * (ring['n'] % nfr)); ring['n'] += 1
            return r
        def reads_tr(k, aset, t, imm, du, base, nfr):
            r = frag(base, nfr)
            war = self.lastuse.get(r, -1)
            ent = []
            for u in range(2):
                ent.append(dict(k=k, aset=aset, areg=aset + t, imm=imm + u * du, dst=(r[0], r[1] + 2 * u), n=2, war=war, op='ds_read_b64_tr_b16'))
            stage_reads[k] += ent
            return r, ent
        def use(ent, idx):
            for x in ent: x.setdefault('use', idx)

        epi1 = []
        for k in range(14):
            units = [divmod(4 * k + i, 14) for i in range(4)]
            subs = []
            for i, (cb, j) in enumerate(units):
                if subs and subs[-1][0] == cb: subs[-1][1].append((i, j))
                else: subs.append((cb, [(i, j)]))
            for cb, lst in subs:
                for t in range(4):
                    fr = [reads_tr(k, A_WQ, t, i * 8192, 512, AG_WQR, 16) for (i, j) in lst]
                    for q in range(3):
                        for (i, j), (r, ent) in zip(lst, fr):
                            d = acc1(cb, t, q)
                            o = self.mf(d, r, Xr(j, q), None if j == 0 else d)
                            use(ent, o.gap)
                        if lst[-1][1] == 13: epi1.append((cb, t, q, o))
        end1 = len(S.mf)
        ring['n'] = 0
        sdone = {}; sfirst = {}
        NSUB = opt['nsub']
        if stop >= 2:
            def kfr(n):
                k = 14 + n // 4; res = []
                for j in range(8):
                    r = frag(AG_KV, 16)
                    ent = [dict(k=k, aset=A_K, areg=A_K + (j & 3), imm=(n % 4) * 8192 + (j >> 2) * 256, dst=r, n=4,
                                war=self.lastuse.get(r, -1), op='ds_read_b128')]
                    stage_reads[k] += ent; res.append((r, ent))
                return res
            def chain(n, q, fr, js):
                for j in js:
                    d = Sr(n, q)
                    c = d if j else (None if n < NSUB else ('v', V_CI + 4 * q))
                    o = self.mf(d, fr[j][0], Qr(j, q), c); use(fr[j][1], o.gap)
                    if j == 0: sfirst[n, q] = o
                    if j == 7: sdone[n, q] = o
            f0, f1 = kfr(0), kfr(1)
            for n, fr in ((0, f0), (1, f1)):
                for q in range(3): chain(n, q, fr, range(6))
            self.qfinal = len(S.mf)
            for n, fr in ((0, f0), (1, f1)):
                for q in range(3): chain(n, q, fr, (6, 7))
            for n in range(2, 32):
                fr = kfr(n)
                for q in range(3): chain(n, q, fr, range(8))
            end2 = len(S.mf)
            ldone = {}; pfirst = {}
            for q in range(3):
                for J in range(16):
                    d = ('v', V_CI + 4 * q)
                    o = self.mf(d, ('a', AG_ONE), Pr(J, q), d if J else None)
                    pfirst[J, q] = o
                ldone[q] = o
        epi3 = []; a3first = {}
        if stop >= 3:
            for dp in range(4):
                for kh in range(2):
                    k = 22 + 2 * dp + kh
                    for t in range(4):
                        fr = [reads_tr(k, A_V, t, J * 4096, 2048, AG_KV, 16) for J in range(8)]
                        for q in range(3):
                            for J in range(8):
                                d = acc3(t, q)
                                o = self.mf(d, fr[J][0], Pr(8 * kh + J, q), d if (kh or J) else None); use(fr[J][1], o.gap)
                                if kh == 0 and J == 0: a3first[dp, t, q] = o
                            if kh: epi3.append((dp, t, q, o))
        end3 = len(S.mf)
        ring['n'] = 0
        a4done = {}; a4first = {}; ofirst = {}
        if stop >= 4:
            for pos in range(7):
                for kh in range(2):
                    k = 30 + 2 * pos + kh
                    for ts in range(4):
                        fr = [reads_tr(k, A_WO, ts, J * 4096, 2048, AG_WOR, 16) for J in range(4)]
                        for q in range(3):
                            for J in range(4):
                                d = acc4(ts, q)
                                o = self.mf(d, fr[J][0], Qr(4 * kh + J, q), d if (kh or J) else None); use(fr[J][1], o.gap)
                                ofirst.setdefault((4 * kh + J, q), o)
                                if kh == 0 and J == 0: a4first[pos, ts, q] = o
                            if kh: a4done[pos, ts, q] = o
        N = len(S.mf)
        nst = {1: 14, 2: 22, 3: 30, 4: 44}[stop]
        self.marks = dict(end1=end1, end3=end3, N=N)

        bar = {}; rops = {}
        extra_needs = {k: [] for k in range(46)}
        extra_after = {k: [] for k in range(46)}
        self.bar = bar
        pre_reads = []
        lastread = {A_WQ: None, A_K: None, A_V: None, A_WO: None}
        for k in range(nst):
            ents = sorted(stage_reads[k], key=lambda x: x['use'])
            first_use = min(x['use'] for x in ents)
            if k == 0:
                b = None
            else:
                b = I('s_barrier', 'S', tag='barrier', earliest=0, deadline=first_use - 2,
                      after=[(rops[k - 1][-1], opt['barlag'])] if rops[k - 1][-1].gap != -1 else [])
                b.target = first_use - 30
                S.add(b)
            bar[k] = b
            aset = ents[0]['aset']
            delta = self.slot[k] - self.base[aset]
            bumps = []
            if delta not in (0, 1) or (delta == 1 and max(x['imm'] for x in ents) + SLOT > 65535 - 16):
                for t in range(4):
                    lit = (delta * SLOT) & 0xffffffff
                    o = I(f'v_add_u32 v{aset+t}, {hex(lit)}, v{aset+t}', 'V', [('v', aset + t)], [('v', aset + t)],
                          after=[(lastread[aset], 0)], target=first_use - 40, deadline=first_use - 3)
                    S.add(o); bumps.append(o)
                self.base[aset] = self.slot[k]; delta = 0
            rops[k] = []
            prev = None
            for x in ents:
                txt = f"{x['op']} {R(x['dst'], x['n'])}, v{x['areg']} offset:{x['imm'] + delta * SLOT}"
                o = I(txt, 'D', [('v', x['areg'])], RR(x['dst'], x['n']), 'lgkm', earliest=max(x['war'], 0),
                      deadline=x['use'] - 1, target=x['use'] - opt['lead'])
                if b is not None: o.after.append((b, 0))
                if bumps: o.after.append((bumps[x['areg'] - aset], 1))
                if prev is not None and prev.gap != -1: o.after.append((prev, 0))
                if k == 0 and len(pre_reads) < 12:
                    o.gap = -1; pre_reads.append(o)
                else:
                    S.add(o)
                prev = o
                rops[k].append(o)
                S.reserve.add(x['use'] - 1)
            lastread[aset] = prev
        for j in (12, 13):
            for q in range(3):
                so = ['0', f's{S_X1}', f's{S_X2}'][q]
                S.add(I(f'buffer_load_dwordx4 {R(Xr(j, q), 4)}, v{V_XOFF}, s[{SRD_X}:{SRD_X+3}], {so} offen offset:{64*j}',
                        'G', [('v', V_XOFF)], RR(Xr(j, q), 4), 'vm', earliest=14, target=14, deadline=60))
        seen = set()
        for o in S.mf[:168]:
            r = o.rd[4]
            if r not in seen: seen.add(r); S.reserve.add(o.gap - 1)

        dchain = {'prev': None, 'n': 0}
        dmas_all = []
        for k in range(3, nst if stop == 4 else min(nst + opt.get('extra_st', 0), 44)):
            p = self.prev[k]
            for m, d in enumerate(self.stage_dmas(k)):
                if p is None:
                    tgt = opt['kpre0'] + ((k - 14) * 8 + m) * opt['kprestep']; aft = None; soft = True
                else:
                    aft = bar[p + 1]; soft = False
                    sp = 5 if (k < 14 or k >= 34) else 10
                    tgt = aft.target + 2 + m * sp
                dmas_all.append((tgt, k, m, d, aft, soft))
        dmas_all.sort(key=lambda x: x[0])
        for k in range(3, 44): self.dma.setdefault(k, [])
        for (tgt, k, m, (vo, srd, (sb, lit), lo, nt), aft, soft) in dmas_all:
            so = S_OFF[dchain['n'] & 1]; dchain['n'] += 1
            pv = dchain['prev']
            m0 = I(f's_add_u32 m0, s{S_WB}, {lo}', 'S', wr=[('m0', 0)], target=tgt - 3, after=[(pv, 1)] if pv else [])
            st = I(f's_mov_b32 s{so}, {lit}' if sb is None else f's_add_u32 s{so}, s{sb}, {lit}', 'S', target=tgt - 4,
                   after=[(dchain.get('pp'), 1)] if dchain.get('pp') else [])
            o = I(self.dma_text(vo, srd, f's{so}', nt), 'G', [('v', vo)], [], 'vm', target=tgt,
                  after=[(m0, 1), (st, 0)] + ([(aft, 0)] if aft else []))
            o.soft = soft
            if k < nst: o.deadline = bar[k].deadline - 1
            S.add(m0); S.add(st); S.add(o)
            dchain['pp'] = pv; dchain['prev'] = o
            self.dma[k].append(o)
        for k in range(1, nst):
            bar[k].needs = list(self.dma[k]) + list(rops[k - 1])
            bar[k].after += [(d, 1) for d in self.dma[k] if d.gap != -1 and d in S.fill]

        done1 = {}
        for (cb, t, q, o) in epi1: done1[cb, t, q] = o
        for cb in range(4):
            for p in range(2):
                J = 2 * cb + p
                for q in range(3):
                    dl = None
                    if stop >= 2: dl = min(x.gap for x in S.mf[end1:end1 + 48] if x.rd[4] == Qr(J, q)) - 1
                    cv = []
                    for h2 in range(2):
                        t = 2 * p + h2; src = acc1(cb, t, q); o = done1[cb, t, q]
                        for pr in range(2):
                            ms = []
                            for r in range(2):
                                x = src[1] + 2 * pr + r
                                ms.append(S.add(I(f'v_mul_f32 v{x}, s{S_C}, v{x}', 'V', [('v', x)], [('v', x)], after=[(o, 3)], target=o.gap + 3)))
                            dreg = Qr(J, q)[1] + 2 * h2 + pr
                            cv.append(S.add(I(f'v_cvt_pk_bf16_f32 v{dreg}, v{src[1]+2*pr}, v{src[1]+2*pr+1}', 'V',
                                              regs('v', src[1] + 2 * pr, 2), [('v', dreg)], after=[(m, 0) for m in ms], target=o.gap + 4)))
                    for pr in range(2):
                        A_, B_ = Qr(J, q)[1] + pr, Qr(J, q)[1] + 2 + pr
                        s1 = S.add(I(f'v_permlane32_swap_b32 v{A_}, v{B_}', 'X', [('v', A_), ('v', B_)], [('v', A_), ('v', B_)],
                                     after=[(cv[pr], 2), (cv[2 + pr], 2)], target=o.gap + 6))
                        s2 = S.add(I(f'v_permlane16_swap_b32 v{A_}, v{B_}', 'X', [('v', A_), ('v', B_)], [('v', A_), ('v', B_)],
                                     after=[(s1, 2)], target=o.gap + 8, deadline=dl))
                        done1['fix', J, q, pr] = s2
                    if cb == 2:
                        for c_ in cv: c_.deadline = end1 - 1
                    if cb < 2:
                        nxt = min(x.gap for x in S.mf[:end1] if x.gap > o.gap and x.wr[0] == acc1(cb, 2 * p, q))
                        for c_ in cv: c_.deadline = nxt if c_.deadline is None else min(c_.deadline, nxt)

        if stop >= 2:
            hook = S.add(I(f's_cmp_eq_u32 s{S_MODE}, 1\ns_cbranch_scc1 L_maxpass\nL_maxret:', 'S',
                           after=[(done1['fix', J, q, pr], 1) for J in range(8) for q in range(3) for pr in range(2)],
                           target=self.qfinal, deadline=sdone[0, 0].gap + 3))
            mneg = {}
            for q in range(3):
                s = Sr(0, q)[1]; o = sdone[0, q]; t0, t1 = V_T + 8 + q, V_T + 4 + q; g0 = o.gap + 3
                x1 = S.add(I(f'v_max3_f32 v{t0}, v{s}, v{s+1}, v{s+2}', 'V', regs('v', s, 3), [('v', t0)], after=[(o, 3), (hook, 0)], target=g0))
                x2 = S.add(I(f'v_max3_f32 v{t0}, v{t0}, v{s+3}, v{V_MPRE+q}', 'V', [('v', t0), ('v', s + 3), ('v', V_MPRE + q)], [('v', t0)], after=[(x1, 0)], target=g0))
                prev = x2
                for sw in ('v_permlane32_swap_b32', 'v_permlane16_swap_b32'):
                    y1 = S.add(I(f'v_mov_b32 v{t1}, v{t0}', 'V', [('v', t0)], [('v', t1)], after=[(prev, 0)], target=g0))
                    y2 = S.add(I(f'{sw} v{t0}, v{t1}', 'X', [('v', t0), ('v', t1)], [('v', t0), ('v', t1)], after=[(y1, 2)], target=g0))
                    prev = S.add(I(f'v_max_f32 v{t0}, v{t0}, v{t1}', 'V', [('v', t0), ('v', t1)], [('v', t0)], after=[(y2, 1)], target=g0))
                cs = []
                for r in range(4):
                    cs.append(S.add(I(f'v_sub_f32 v{V_CI+4*q+r}, 0, v{t0}', 'V', [('v', t0)], [('v', V_CI + 4 * q + r)], after=[(prev, 0)],
                                      target=g0 + (0 if r == 0 else 8), deadline=sfirst[NSUB, q].gap - 1)))
                mneg[q] = cs[0]; mneg[q, 'all'] = cs
            tn = 0; tlast = {}
            for n in range(32):
                for q in range(3):
                    s = Sr(n, q)[1]; o = sdone[n, q]; J = n >> 1
                    nxt = [x for (n2, q2), x in sfirst.items() if n2 > n and q2 == q and Sr(n2, q) == Sr(n, q)]
                    dl_s = min(x.gap for x in nxt) if nxt else None
                    if n >= 30 and stop >= 3: dl_s = a3first[0, n - 30, q].gap
                    for pr in range(2):
                        ex = []
                        for r in range(2):
                            x = s + 2 * pr + r; aft = [(o, 3)]
                            if n < NSUB:
                                sb = S.add(I(f'v_add_f32 v{x}, v{x}, v{V_CI+4*q}', 'V', [('v', x), ('v', V_CI + 4 * q)], [('v', x)],
                                             after=[(o, 3), (mneg[q], 0)], target=o.gap + 3))
                                aft = [(sb, 1)]
                            ex.append(S.add(I(f'v_exp_f32 v{x}, v{x}', 'X', [('v', x)], [('v', x)], after=aft, target=o.gap + 4)))
                        P = Pr(J, q); dst = P[1] + 2 * (n & 1) + pr
                        if P[0] == 'v':
                            S.add(I(f'v_cvt_pk_bf16_f32 v{dst}, v{s+2*pr}, v{s+2*pr+1}', 'V', regs('v', s + 2 * pr, 2), [('v', dst)],
                                    after=[(x, 1) for x in ex], target=o.gap + 6,
                                    deadline=min([pfirst[J, q].gap - 1] + ([dl_s] if dl_s else []))))
                        else:
                            T = V_T + tn % 4; tn += 1
                            aft = [(x, 1) for x in ex]
                            if T in tlast: aft.append((tlast[T], 0))
                            c_ = S.add(I(f'v_cvt_pk_bf16_f32 v{T}, v{s+2*pr}, v{s+2*pr+1}', 'V', regs('v', s + 2 * pr, 2), [('v', T)],
                                         after=aft, target=o.gap + 6, deadline=dl_s))
                            tlast[T] = S.add(I(f'v_accvgpr_write_b32 a{dst}, v{T}', 'V', [('v', T)], [('a', dst)], after=[(c_, 0)],
                                               target=o.gap + 6, deadline=pfirst[J, q].gap - 1))
            rcp = {}
            prevc = None
            for q in range(3):
                l = V_CI + 4 * q; o = ldone[q]
                dl = a3first[0, 3, q].gap if stop >= 3 else None
                rcp[q] = S.add(I(f'v_rcp_f32 v{V_RCP+q}, v{l}', 'X', [('v', l)], [('v', V_RCP + q)], after=[(o, 3)], target=o.gap + 3, deadline=dl))
                c1 = S.add(I(f'v_cmp_nge_f32 vcc, s{S_THR}, v{l}', 'V', [('v', l)], [('vcc', 0)], after=[(o, 3)] + ([(prevc, 1)] if prevc else []),
                             target=o.gap + 3, deadline=dl))
                prevc = S.add(I(f's_or_b32 s{S_T3}, vcc_lo, vcc_hi\ns_or_b32 s{S_BAD}, s{S_BAD}, s{S_T3}', 'S', [('vcc', 0)], [], after=[(c1, 3)], target=o.gap + 6))
            self.badop = prevc
            if stop >= 4:
                g1 = end1 + 130; g2 = g1 + 330; g3 = g2 + 290
                n0 = S.add(I(f'v_lshlrev_b32 v1, 3, v2', 'V', [('v', 2)], [('v', 1)], earliest=g1 - 4))
                n1 = S.add(I(f'buffer_load_dwordx2 v[{V_FLG}:{V_FLG+1}], v1, s[{SRD_FLG}:{SRD_FLG+3}], 0 offen sc1', 'G', [('v', 1)],
                             regs('v', V_FLG, 2), 'vm', earliest=g1, after=[(n0, 1)]))
                n2 = S.add(I(f'v_lshrrev_b64 v[{V_FLG}:{V_FLG+1}], v2, v[{V_FLG}:{V_FLG+1}]', 'X', regs('v', V_FLG, 2) + [('v', 2)], regs('v', V_FLG, 2),
                             earliest=g2, after=[(n1, 1)]))
                n3 = S.add(I(f'v_and_b32 v{V_FLG}, 1, v{V_FLG}', 'V', [('v', V_FLG)], [('v', V_FLG)], earliest=g2, after=[(n2, 0)]))
                n4 = S.add(I(f'v_cmp_eq_u32 vcc, 0, v{V_FLG}', 'V', [('v', V_FLG)], [('vcc', 0)], earliest=g2, after=[(n3, 0)]))
                n5 = S.add(I(f's_or_b32 s{S_NON}, vcc_lo, 1', 'S', [('vcc', 0)], [('s', S_NON)], earliest=g2, after=[(n4, 3)]))
                n6 = S.add(I(f's_mov_b32 s{S_NON+1}, vcc_hi', 'S', [('vcc', 0)], [('s', S_NON + 1)], earliest=g2, after=[(n4, 3)]))
                cq = V_T + 8
                n7 = [S.add(I(f'v_mov_b32 v{cq}, s{S_NON}', 'V', [], [('v', cq)], earliest=g2, after=[(n5, 1)])),
                      S.add(I(f'v_mov_b32 v{cq+1}, s{S_NON+1}', 'V', [], [('v', cq + 1)], earliest=g2, after=[(n6, 1)])),
                      S.add(I(f'v_mov_b32 v{cq+2}, 0', 'V', [], [('v', cq + 2)], earliest=g2)),
                      S.add(I(f'v_mov_b32 v{cq+3}, 0', 'V', [], [('v', cq + 3)], earliest=g2))]
                n8s = S.add(I(f's_lshl_b32 s{S_T2}, s{S_B}, 3', 'S', earliest=g2))
                n8 = S.add(I(f'buffer_atomic_cmpswap_x2 v[{cq}:{cq+3}], v{V_THR0}, s[{SRD_DBG}:{SRD_DBG+3}], s{S_T2} offen sc0 sc1', 'G',
                             regs('v', cq, 4) + [('v', V_THR0)], regs('v', cq, 2), 'vm', earliest=g2, after=[(x, 1) for x in n7] + [(n8s, 1)]))
                n9 = S.add(I(f'v_readfirstlane_b32 s{S_T0}, v{cq}', 'V', [('v', cq)], [('s', S_T0)], earliest=g3, after=[(n8, 1)]))
                n10 = S.add(I(f'v_readfirstlane_b32 s{S_T1}, v{cq+1}', 'V', [('v', cq + 1)], [('s', S_T1)], earliest=g3, after=[(n9, 0)],
                              deadline=a3first[0, 2, 0].gap - 1))
                n11 = S.add(I(f's_or_b32 s{S_T2}, s{S_T0}, s{S_T1}\ns_cselect_b32 s{S_NON}, s{S_T0}, s{S_NON}\ns_cselect_b32 s{S_NON+1}, s{S_T1}, s{S_NON+1}',
                              'S', [('s', S_T0), ('s', S_T1)], [('s', S_NON), ('s', S_NON + 1)], earliest=g3, after=[(n10, 3)]))
                n12 = S.add(I(f'v_mov_b32 v{V_NON}, s{S_NON}', 'V', [], [('v', V_NON)], earliest=g3, after=[(n11, 1)]))
                n13 = S.add(I(f'v_mov_b32 v{V_NON+1}, s{S_NON+1}', 'V', [], [('v', V_NON + 1)], earliest=g3, after=[(n11, 1)]))

        lastcv3 = []
        for (dp, t, q, o) in epi3:
            src = acc3(t, q)[1]; J = 2 * dp + (t >> 1)
            dl = []
            if dp < 3: dl.append(a3first[dp + 1, t, q].gap)
            if stop >= 4: dl.append(ofirst[J, q].gap - 1)
            for pr in range(2):
                ms = [S.add(I(f'v_mul_f32 v{src+2*pr+r}, v{V_RCP+q}, v{src+2*pr+r}', 'V', [('v', src + 2 * pr + r), ('v', V_RCP + q)],
                              [('v', src + 2 * pr + r)], after=[(o, 3), (rcp[q], 1)], target=o.gap + 3)) for r in range(2)]
                dreg = Qr(J, q)[1] + 2 * (t & 1) + pr
                lastcv3.append(S.add(I(f'v_cvt_pk_bf16_f32 v{dreg}, v{src+2*pr}, v{src+2*pr+1}', 'V', regs('v', src + 2 * pr, 2), [('v', dreg)],
                        after=[(m, 0) for m in ms], target=o.gap + 4, deadline=min(dl) if dl else None)))

        if stop >= 4:
            w0 = S.add(I(f's_cmp_eq_u32 s{S_MODE}, 0\ns_cselect_b32 s{S_BAD}, s{S_BAD}, 0', 'S', after=[(self.badop, 1)], target=end3 - 60))
            w1 = S.add(I(f'v_mov_b32 v1, s{S_BAD}', 'V', [], [('v', 1)], after=[(w0, 1)], target=end3 - 50))
            w2s = S.add(I(f's_lshl_b32 s{S_T3}, s{S_W}, 2', 'S', after=[(w0, 1)], target=end3 - 50))
            w2 = S.add(I(f'v_mov_b32 v3, s{S_T3}', 'V', [], [('v', 3)], after=[(w2s, 1)], target=end3 - 50))
            w2b = S.add(I(f'v_add_u32 v3, {XSLOT*SLOT + 24576}, v3', 'V', [('v', 3)], [('v', 3)], after=[(w2, 0)], target=end3 - 50))
            w3 = S.add(I(f'ds_write_b32 v3, v1', 'D', [('v', 1), ('v', 3)], [], 'lgkm', after=[(w1, 1), (w2b, 1), (bar[30], 0)], target=end3))
            bar[31].needs.append(w3); bar[31].after.append((w3, 3))
            w4a = S.add(I(f'v_mov_b32 v3, {XSLOT*SLOT + 24576}', 'V', [], [('v', 3)], after=[(w3, 1)], target=end3 + 10))
            vt = V_T + 8
            w4 = S.add(I(f'ds_read_b128 v[{vt}:{vt+3}], v3', 'D', [('v', 3)], regs('v', vt, 4), 'lgkm', after=[(bar[31], 0), (w4a, 1)] + [(x, 1) for x in lastcv3[-24:]], target=end3 + 40,
                         earliest=end3 + 30))
            w5 = S.add(I(f'v_or3_b32 v{vt}, v{vt}, v{vt+1}, v{vt+2}', 'V', regs('v', vt, 3), [('v', vt)], after=[(w4, 8)], target=end3 + 50))
            w6 = S.add(I(f'v_or_b32 v{vt}, v{vt}, v{vt+3}', 'V', [('v', vt), ('v', vt + 3)], [('v', vt)], after=[(w5, 0)], target=end3 + 50))
            w7 = S.add(I(f'v_cmp_ne_u32 vcc, 0, v{vt}', 'V', [('v', vt)], [('vcc', 0)], after=[(w6, 0)], target=end3 + 50))
            w8 = S.add(I(f's_cbranch_vccnz L_restart', 'S', [('vcc', 0)], [], after=[(w7, 5)], target=end3 + 56))
            self.xw = {}; sends = {}
            for pos in range(7):
                kB = 31 + 2 * pos
                ws_ = []
                for ts in range(2):
                    for q in range(3):
                        o = a4done[pos, ts, q]; src = acc4(ts, q)[1]
                        for hf in range(2):
                            x = S.add(I(f'ds_write_b64 v{V_XW}, v[{src+2*hf}:{src+2*hf+1}] offset:{(ts*3+q)*1024+8*hf}', 'G',
                                        [('v', V_XW)] + regs('v', src + 2 * hf, 2), [], 'lgkm', after=[(o, 3), (bar[kB], 0)], target=o.gap + 3))
                            if pos < 6: x.deadline = a4first[pos + 1, ts, q].gap - 1
                            ws_.append(x)
                self.xw[pos] = ws_
                if pos == 6: break
                nb = bar[kB + 1]
                nb.needs += ws_; nb.after += [(x, 4) for x in ws_]
                st_ = []
                for q in range(3):
                    cv = []
                    for ts in range(2):
                        pt = PT(ts, q)[1]; own = acc4(2 + ts, q)[1]; o = a4done[pos, 2 + ts, q]
                        rd = S.add(I(f'ds_read_b128 v[{pt}:{pt+3}], v{V_XR} offset:{(ts*3+q)*1024}', 'D', [('v', V_XR)], regs('v', pt, 4), 'lgkm',
                                     after=[(nb, 0)] + ([(x, 1) for x in sends[pos - 1]['cv']] if pos else []), target=o.gap - 6))
                        bar[kB + 2].needs.append(rd); bar[kB + 2].after.append((rd, 4))
                        for pr in range(2):
                            ad = [S.add(I(f'v_add_f32 v{pt+2*pr+r}, v{pt+2*pr+r}, v{own+2*pr+r}', 'V', [('v', pt + 2 * pr + r), ('v', own + 2 * pr + r)],
                                          [('v', pt + 2 * pr + r)], after=[(o, 3), (rd, 7)], target=o.gap + 3,
                                          deadline=a4first[pos + 1, 2 + ts, q].gap)) for r in range(2)]
                            T = V_T + 4 * q + 2 * ts + pr
                            aft = [(x, 0) for x in ad] + [(w8, 0)]
                            if pos: aft.append((sends[pos - 1]['st'][q], 2))
                            cv.append(S.add(I(f'v_cvt_pk_bf16_f32 v{T}, v{pt+2*pr}, v{pt+2*pr+1}', 'V', regs('v', pt + 2 * pr, 2), [('v', T)],
                                              after=aft, target=o.gap + 5)))
                    T = V_T + 4 * q
                    st_.append((S.add(I(f'buffer_store_dwordx4 v[{T}:{T+3}], v{V_SEND}, s[{SRD_WS}:{SRD_WS+3}], s{S_SEND+pos} offen offset:{q*1024} sc1', 'G',
                                        regs('v', T, 4) + [('v', V_SEND)], [], 'vm', after=[(x, 1) for x in cv], target=o.gap + 8)), cv))
                sends[pos] = dict(st=[x[0] for x in st_], cv=[c for x in st_ for c in x[1]])
                kF = kB + 1 + opt['flaglag']
                if kF < 44:
                    bar[kF].needs += sends[pos]['st']; bar[kF].after += [(x, 1) for x in sends[pos]['st']]
                    S.add(I(f'buffer_store_dwordx2 v[{V_NON}:{V_NON+1}], v{V_THR0}, s[{SRD_FLG}:{SRD_FLG+3}], s{S_FOFF+pos} offen sc1', 'G',
                            regs('v', V_NON, 2) + [('v', V_THR0)], [], 'vm', after=[(bar[kF], 0)], target=bar[kF].target))
                else:
                    self.late_flags = getattr(self, 'late_flags', []) + [pos]

        L = self.pre
        self.e(L, 's_barrier', tag='barrier', needs=self.dma[0])
        L += pre_reads
        if opt['stamp']: self.e(L, 's_memtime s[100:101]')

    def tail(self):
        L = self.post; e = self.e; vop = self.vop
        e(L, 's_waitcnt vmcnt(0) lgkmcnt(0)', tag='fullwait')
        e(L, 's_barrier')
        for pos in getattr(self, 'late_flags', []):
            e(L, f'buffer_store_dwordx2 v[{V_NON}:{V_NON+1}], v{V_THR0}, s[{SRD_FLG}:{SRD_FLG+3}], s{S_FOFF+pos} offen sc1', 'G', [], [], 'vm')
        for q in range(3):
            for ts in range(2):
                pt = PT(ts, q)[1]
                e(L, f'ds_read_b128 v[{pt}:{pt+3}], v{V_XR} offset:{(ts*3+q)*1024}', 'D', [], regs('v', pt, 4), 'lgkm')
        for q in range(3):
            for ts in range(2):
                pt = PT(ts, q)[1]; own = acc4(2 + ts, q)[1]
                for r in range(4): vop(L, 'v_add_f32', pt + r, f'v{pt+r}', f'v{own+r}')
        e(L, f's_cmp_eq_u32 s{S_H}, 7'); e(L, 's_cbranch_scc1 L_x_lastsend')
        e(L, f's_cmp_lg_u32 s{S_W}, 0'); e(L, 's_cbranch_scc1 L_x_polled')
        vop(L, 'v_and_b32', 1, 7, 'v2'); vop(L, 'v_lshlrev_b32', 1, 3, 'v1')
        e(L, f's_lshl_b32 s{S_T0}, s{S_H}, 6')
        e(L, f's_lshl_b32 s{S_T1}, 1, s{S_H}')
        e(L, f's_mov_b32 s{S_T2}, 0')
        e(L, 'L_x_poll:', tag='label')
        e(L, f'buffer_load_dwordx2 v[{V_FLG}:{V_FLG+1}], v1, s[{SRD_FLG}:{SRD_FLG+3}], s{S_T0} offen sc1', 'G', [('v', 1)], regs('v', V_FLG, 2), 'vm')
        e(L, 's_waitcnt vmcnt(0)', tag='vmwait0')
        e(L, f'v_cmp_eq_u64 vcc, v[{V_FLG}:{V_FLG+1}], v[{V_NON}:{V_NON+1}]', 'V', regs('v', V_FLG, 2), [('vcc', 0)])
        e(L, f's_add_u32 s{S_T2}, s{S_T2}, 1')
        e(L, 's_nop 3')
        e(L, f's_or_b32 s{S_T3}, vcc_lo, s{S_T1}'); e(L, f's_and_b32 s{S_T3}, s{S_T3}, 0xff')
        e(L, f's_cmp_eq_u32 s{S_T3}, 0xff'); e(L, 's_cbranch_scc1 L_x_polled')
        e(L, f's_cmp_lt_u32 s{S_T2}, 0x40000'); e(L, 's_cbranch_scc1 L_x_poll')
        e(L, 'L_x_polled:', tag='label')
        e(L, 's_barrier')
        e(L, f's_mul_i32 s{S_T0}, s{S_B}, 7'); e(L, f's_add_u32 s{S_T0}, s{S_T0}, s{S_H}'); e(L, f's_lshl_b32 s{S_T0}, s{S_T0}, 3')
        for k in range(7):
            e(L, f's_add_u32 s{S_T1}, s{S_H}, {k+1}'); e(L, f's_and_b32 s{S_T1}, s{S_T1}, 7')
            e(L, f's_add_u32 s{S_T1}, s{S_T1}, s{S_T0}'); e(L, f's_mul_i32 s{S_T1}, s{S_T1}, {4*XB}')
            for q in range(3):
                d = V_Q + (k * 3 + q) * 4
                e(L, f'buffer_load_dwordx4 v[{d}:{d+3}], v{V_SEND}, s[{SRD_WS}:{SRD_WS+3}], s{S_T1} offen offset:{q*1024} sc1', 'G', [], regs('v', d, 4), 'vm')
        vop(L, 'v_and_b32', 80, 15, 'v2'); vop(L, 'v_lshrrev_b32', 81, 4, 'v2')
        e(L, f's_mul_i32 s{S_T2}, s{S_RH}, 48'); vop(L, 'v_add_u32', 80, f's{S_T2}', 'v80')
        vop(L, 'v_mul_u32_u24', 80, 896, 'v80'); vop(L, 'v_lshl_add_u32', 80, 'v81', 3, 'v80')
        e(L, f's_lshl_b32 s{S_T2}, s{S_HH}, 6'); e(L, f's_lshl_b32 s{S_T3}, s{S_H}, 7'); e(L, f's_add_u32 s{S_T2}, s{S_T2}, s{S_T3}')
        vop(L, 'v_add_u32', V_XOFF, f's{S_T2}', 'v80')
        for k in range(7):
            for q in range(3):
                d = V_Q + (k * 3 + q) * 4
                for x in range(4):
                    pt = PT(x >> 1, q)[1] + 2 * (x & 1)
                    vop(L, 'v_lshlrev_b32', 80 + (x & 1), 16, f'v{d+x}')
                    vop(L, 'v_and_b32', d + x, 0xffff0000, f'v{d+x}')
                    vop(L, 'v_add_f32', pt, f'v{pt}', f'v{80+(x&1)}')
                    vop(L, 'v_add_f32', pt + 1, f'v{pt+1}', f'v{d+x}')
        for q in range(3):
            for ts in range(2):
                pt = PT(ts, q)[1]; T = V_T + 4 * q + 2 * ts
                vop(L, 'v_cvt_pk_bf16_f32', T, f'v{pt}', f'v{pt+1}'); vop(L, 'v_cvt_pk_bf16_f32', T + 1, f'v{pt+2}', f'v{pt+3}')
                so = ['0', f's{S_X1}', f's{S_X2}'][q]
                e(L, f'buffer_store_dwordx2 v[{T}:{T+1}], v{V_XOFF}, s[{SRD_OUT}:{SRD_OUT+3}], {so} offen offset:{32*ts}', 'G', regs('v', T, 2), [], 'vm')
        self.stamp_out(L)
        e(L, 's_endpgm')
        e(L, 'L_x_lastsend:', tag='label')
        for q in range(3):
            for ts in range(2):
                pt = PT(ts, q)[1]; T = V_T + 4 * q + 2 * ts
                vop(L, 'v_cvt_pk_bf16_f32', T, f'v{pt}', f'v{pt+1}'); vop(L, 'v_cvt_pk_bf16_f32', T + 1, f'v{pt+2}', f'v{pt+3}')
            T = V_T + 4 * q
            e(L, f'buffer_store_dwordx4 v[{T}:{T+3}], v{V_SEND}, s[{SRD_WS}:{SRD_WS+3}], s{S_SEND+6} offen offset:{q*1024} sc1', 'G', regs('v', T, 4), [], 'vm')
        e(L, 's_waitcnt vmcnt(0)', tag='vmwait0'); e(L, 's_barrier')
        e(L, f'buffer_store_dwordx2 v[{V_NON}:{V_NON+1}], v{V_THR0}, s[{SRD_FLG}:{SRD_FLG+3}], s{S_FOFF+6} offen sc1', 'G', [], [], 'vm')
        self.stamp_out(L)
        e(L, 'L_end:', tag='label')
        e(L, 's_endpgm')

    def stamp_out(self, L):
        if not self.opt['stamp']: return
        e = self.e
        e(L, 's_waitcnt vmcnt(0)', tag='vmwait0')
        e(L, 's_memtime s[40:41]'); e(L, 's_memrealtime s[42:43]'); e(L, 's_waitcnt lgkmcnt(0)')
        lst = [98, 100] + self.stamps + [40, 42]
        e(L, f's_lshl_b32 s{S_T0}, s2, 2'); e(L, f's_add_u32 s{S_T0}, s{S_T0}, s{S_W}'); e(L, f's_lshl_b32 s{S_T0}, s{S_T0}, 8')
        e(L, f's_add_u32 s{S_T0}, s{S_T0}, {48 << 20}')
        self.vop(L, 'v_mov_b32', 1, 0)
        for i, s in enumerate(lst):
            self.vop(L, 'v_mov_b32', 3, f's{s}')
            e(L, f'buffer_store_dword v3, v1, s[{SRD_WS}:{SRD_WS+3}], s{S_T0} offen offset:{4*i}', 'G', [('v', 3)], [], 'vm')
            e(L, 's_nop 1')

    def slow_paths(self):
        L = self.extra; e = self.e; vop = self.vop
        e(L, 'L_restart:', tag='label')
        e(L, 's_waitcnt vmcnt(0) lgkmcnt(0)', tag='fullwait'); e(L, 's_nop 15'); e(L, 's_barrier')
        e(L, f's_mov_b32 s{S_MODE}, 1')
        vop(L, 'v_and_b32', 2, 63, 'v0'); vop(L, 'v_and_b32', 83, 15, 'v2'); vop(L, 'v_lshrrev_b32', 84, 4, 'v2')
        e(L, f's_mul_i32 s{S_T2}, s{S_RH}, 48'); vop(L, 'v_add_u32', 85, f's{S_T2}', 'v83')
        vop(L, 'v_mul_u32_u24', 85, 896, 'v85'); vop(L, 'v_lshl_add_u32', V_XOFF, 'v84', 4, 'v85')
        e(L, 's_getpc_b64 s[40:41]') if False else None
        e(L, 's_branch L_start')
        e(L, 'L_maxpass:', tag='label')
        e(L, 's_nop 7')
        vop(L, 'v_and_b32', 1, 15, 'v2'); vop(L, 'v_lshrrev_b32', 3, 4, 'v2')
        vop(L, 'v_lshlrev_b32', 1, 9, 'v1'); vop(L, 'v_lshl_add_u32', 1, 'v3', 4, 'v1')
        e(L, f's_mov_b32 s{S_T3}, 0')
        e(L, 'L_maxloop:', tag='label')
        for j in range(8):
            e(L, f'buffer_load_dwordx4 a[{96+4*j}:{99+4*j}], v1, s[{SRD_K}:{SRD_K+3}], s{S_T3} offen offset:{64*j}', 'G', [('v', 1)], regs('a', 96 + 4 * j, 4), 'vm')
        e(L, 's_waitcnt vmcnt(0)', tag='vmwait0')
        for q in range(3):
            for j in range(8):
                d = V_S2 + 4 * q
                e(L, f'v_mfma_f32_16x16x32_bf16 v[{d}:{d+3}], a[{96+4*j}:{99+4*j}], {R(Qr(j,q),4)}, ' + ('0' if j == 0 else f'v[{d}:{d+3}]'), 'M',
                  regs('a', 96 + 4 * j, 4) + RR(Qr(j, q), 4) + ([] if j == 0 else regs('v', d, 4)), regs('v', d, 4))
        e(L, 's_nop 15')
        for q in range(3):
            d = V_S2 + 4 * q
            vop(L, 'v_max3_f32', V_MPRE + q, f'v{V_MPRE+q}', f'v{d}', f'v{d+1}')
            vop(L, 'v_max3_f32', V_MPRE + q, f'v{V_MPRE+q}', f'v{d+2}', f'v{d+3}')
        e(L, f's_add_u32 s{S_T3}, s{S_T3}, 8192'); e(L, f's_cmp_lt_u32 s{S_T3}, 262144'); e(L, 's_cbranch_scc1 L_maxloop')
        e(L, 's_nop 7')
        e(L, 's_branch L_maxret')

    def dump(self, lst):
        L = self.post; e = self.e
        e(L, 's_waitcnt vmcnt(0) lgkmcnt(0)', tag='fullwait'); e(L, 's_nop 15')
        self.vop(L, 'v_lshlrev_b32', 1, 4, 'v2')
        e(L, f's_lshl_b32 s{S_T0}, s2, 2'); e(L, f's_add_u32 s{S_T0}, s{S_T0}, s{S_W}'); e(L, f's_lshl_b32 s{S_T0}, s{S_T0}, 16')
        for (kind, first, cnt) in lst:
            for i in range(0, cnt, 4):
                e(L, f'buffer_store_dwordx4 {R((kind, first+i), 4)}, v1, s[{SRD_WS}:{SRD_WS+3}], s{S_T0} offen', 'G', [('v', 1)], [], 'vm')
                e(L, f's_add_u32 s{S_T0}, s{S_T0}, 1024')
        e(L, 'L_end:', tag='label'); e(L, 's_endpgm')

    def run(self):
        opt = self.opt
        self.slots(); self.prologue(); self.build()
        self.stamps = []
        if opt['stamp']:
            pts = [self.marks['end1'], self.marks['end1'] + 768, self.marks['end3'], self.marks['N'] - 1]
            for i, g in enumerate(pts):
                self.S.add(I(f's_memtime s[{44+2*i}:{45+2*i}]', 'S', earliest=g)); self.stamps.append(44 + 2 * i)
        body = self.S.run()
        stop = opt['stop']
        if stop == 4: self.tail()
        elif stop == 1: self.dump([('v', V_Q, 96)])
        elif stop == 2: self.dump([('a', AG_PL, 120), ('v', V_PH, 72), ('v', V_CI, 12)])
        elif stop == 3: self.dump([('v', V_Q, 96)])
        if stop >= 2: self.slow_paths()
        main = insert_waits(self.pre + body + self.post, opt['wlead'])
        main, nfix = check_hazards(main)
        extra, _ = check_hazards(insert_waits(self.extra))
        est, stall = estimate(main)
        sys.stderr.write(f'mfma {len(self.S.mf)} est cycles {est} ({est/len(self.S.mf):.2f}/mfma) overfull gaps {len(stall)} lost {sum(s for _, s in stall)} nops {nfix} instrs {len(main)}\n')
        if opt.get('showstall'): sys.stderr.write(str(stall) + '\n')
        hdr = open('standalone__gqa_block_cached__near_ridge.s.ref').read().split('; Override launch')[0]
        txt = hdr + '; @launch grid=(256,1,1) block=(256,1,1) lds=163840\n'
        txt += f'.amdgcn_target "amdgcn-amd-amdhsa--gfx950"\n.text\n.globl {NAME}\n.p2align 8\n.type {NAME},@function\n{NAME}:\n'
        txt += '\n'.join(o.text for o in main + extra) + '\n'
        txt += f'''.section .rodata,"a"
.p2align 6
.amdhsa_kernel {NAME}
  .amdhsa_next_free_vgpr 512
  .amdhsa_next_free_sgpr 102
  .amdhsa_accum_offset 256
  .amdhsa_group_segment_fixed_size 0
  .amdhsa_kernarg_size 64
  .amdhsa_user_sgpr_count 2
  .amdhsa_user_sgpr_kernarg_segment_ptr 1
  .amdhsa_system_sgpr_workgroup_id_x 1
.end_amdhsa_kernel
'''
        return txt

DEF = dict(stop=4, stamp=0, nt_w=0, nsub=4, lead=14, wlead=7, barlag=6, kpre0=20, kprestep=30, flaglag=2)
def generate(**kw):
    o = dict(DEF); o.update(kw)
    return Gen(o).run()

if __name__ == '__main__':
    kw = {}
    for t in sys.argv[2:]:
        k, x = t.split('='); kw[k] = int(x)
    open(sys.argv[1], 'w').write(generate(**kw))
```
